```python
import torch

def _softmax(x, axis=-1):
    return torch.softmax(x, dim=axis)
def _gelu(x):
    return torch.nn.functional.gelu(x, approximate="tanh")
def _silu(x):
    return torch.nn.functional.silu(x)
def _sigmoid(x):
    return torch.sigmoid(x)
def _layernorm(x, axis=-1, eps=1e-5):
    m = x.mean(dim=axis, keepdim=True)
    v = x.var(dim=axis, keepdim=True, unbiased=False)
    return (x - m) / torch.sqrt(v + eps)
def _scatter_add(tgt, idx, src, axis=0):
    return tgt.clone().index_add_(axis, idx, src)
def _segment_sum(src, seg, n):
    out = torch.zeros((n,) + src.shape[1:], dtype=src.dtype)
    return out.index_add_(0, seg, src)
def _pad(x, pw):
    flat = tuple(v for pair in reversed(pw) for v in pair)
    return torch.nn.functional.pad(x, flat)

kernel_name = 'interleave_layers__mha_block__dense_activation_silu__prompt'

def setup_inputs():

    _w = (lambda a: (lambda t: t.to(torch.bfloat16) if t.is_floating_point() else t)(torch.as_tensor(a)))
    def _A_setup():
        B, S, D, H = 1, 2048, 512, 32
        return {
            "x": _w((lambda *s: torch.randn(*s, dtype=torch.bfloat16) * 0.05)(B, S, D)),
            "wqkv": _w((lambda *s: torch.randn(*s, dtype=torch.bfloat16) * 0.05)(D, 3 * D)),
            "wo": _w((lambda *s: torch.randn(*s, dtype=torch.bfloat16) * 0.05)(D, D)),
        }
    _A_in = _A_setup()

    def _B_setup():
        B, S, D, F = 1, 2048, 512, 1792
        return {
            "x": _w((lambda *s: torch.randn(*s, dtype=torch.bfloat16) * 0.05)(B, S, D)),
            "w1": _w((lambda *s: torch.randn(*s, dtype=torch.bfloat16) * 0.8)(D, F) * (D ** -0.5)),
            "w2": _w((lambda *s: torch.randn(*s, dtype=torch.bfloat16) * 0.2)(F, D) * (F ** -0.5)),
        }
    _B_in = _B_setup()

    return {
        "A_x": _A_in["x"],
        "A_wqkv": _A_in["wqkv"],
        "A_wo": _A_in["wo"],
        "B_x": _B_in["x"],
        "B_w1": _B_in["w1"],
        "B_w2": _B_in["w2"],
    }

def reference(A_x, A_wqkv, A_wo, B_x, B_w1, B_w2):
    def _A_ref(x, wqkv, wo):
        B, S, D = x.shape
        H = 32
        Dh = D // H
        qkv = (lambda x, *d: x.permute(*d))((x @ wqkv).reshape(B, S, 3, H, Dh), 2, 0, 3, 1, 4)
        q, k, v = qkv[0], qkv[1], qkv[2]
        scores = torch.einsum("bhqd,bhkd->bhqk", q, k) * (Dh ** -0.5)
        p = _softmax(scores, axis=-1)
        o = torch.einsum("bhqk,bhkd->bhqd", p, v)
        return (lambda x, *d: x.permute(*d))(o, 0, 2, 1, 3).reshape(B, S, D) @ wo

    def _B_ref(x, w1, w2):
        h = torch.einsum("bsd,df->bsf", x, w1)
        h = _silu(h)
        out = torch.einsum("bsf,fd->bsd", h, w2)
        return out

    x = A_x
    x = x + _A_ref(_layernorm(x, axis=-1), A_wqkv, A_wo)
    x = x + _B_ref(_layernorm(x, axis=-1), B_w1, B_w2)
    x = x + _A_ref(_layernorm(x, axis=-1), A_wqkv, A_wo)
    x = x + _B_ref(_layernorm(x, axis=-1), B_w1, B_w2)
    return x
```

```python
import re

REG_RE = re.compile(r'\b([vas])\[(\d+):(\d+)\]|\b([vas])(\d+)\b|\b(vcc|exec|m0|scc)\b')
TRANS = ('v_exp_', 'v_log_', 'v_rcp_', 'v_rsq_', 'v_sqrt_', 'v_sin_', 'v_cos_')

def regs_of(op):
    out = set()
    for m in REG_RE.finditer(op):
        if m.group(1):
            k, a, b = m.group(1), int(m.group(2)), int(m.group(3))
            rng = range(a, b + 1)
        elif m.group(4):
            k, a = m.group(4), int(m.group(5)); rng = [a]
        else:
            out.add((m.group(6), 0)); continue
        for r in rng:
            out.add(('v', 256 + r) if k == 'a' else (k, r))
    return out

def split_ops(s):
    ops, depth, cur = [], 0, ''
    for ch in s:
        if ch == '[' or ch == '(': depth += 1
        if ch == ']' or ch == ')': depth -= 1
        if ch == ',' and depth == 0:
            ops.append(cur.strip()); cur = ''
        else:
            cur += ch
    if cur.strip(): ops.append(cur.strip())
    return ops

class Ins:
    def __init__(self, text):
        self.text = text
        t = text.split(';')[0].strip()
        self.is_label = t.endswith(':')
        self.is_dir = t.startswith('.') or t == ''
        self.mn = ''
        self.wr = set(); self.rd = set()
        self.kind = 'other'
        if self.is_label or self.is_dir: return
        parts = t.split(None, 1)
        mn = self.mn = parts[0]
        rest = parts[1] if len(parts) > 1 else ''
        ops = split_ops(rest)
        self.ops = ops
        R = [regs_of(o) for o in ops]
        allr = set().union(*R) if R else set()
        if mn.startswith('v_mfma') or mn.startswith('v_smfmac'):
            self.kind = 'xdl'
            self.passes = 4 if '16x16' in mn else 8
            self.D = R[0]; self.A = R[1]; self.B = R[2]
            if mn.startswith('v_smfmac'):
                self.C = R[0]; self.idx = R[3]
            else:
                self.C = R[3]; self.idx = set()
            self.wr = self.D; self.rd = self.A | self.B | self.C | self.idx
        elif mn.startswith('v_'):
            self.kind = 'valu'
            self.trans = mn.startswith(TRANS)
            self.dpp = ('row_' in rest or 'quad_perm' in rest or 'wave_' in rest or '_dpp' in mn)
            self.sdwa = ('dst_sel' in rest and 'dst_sel:DWORD' not in rest) or ('op_sel:' in rest and not mn.startswith('v_pk_'))
            self.dot = mn.startswith('v_dot')
            self.permlane = mn.startswith('v_permlane')
            self.readlane = mn.startswith('v_readlane') or mn.startswith('v_readfirstlane')
            if mn == 'v_nop':
                pass
            elif self.permlane:
                self.wr = R[0] | R[1]; self.rd = R[0] | R[1]
            elif mn.startswith('v_cmp'):
                self.wr = set(R[0]); self.rd = set().union(*R[1:])
                assert not mn.startswith('v_cmpx'), "cmpx unsupported"
            elif mn.startswith(('v_add_co', 'v_sub_co', 'v_addc_co', 'v_subb_co', 'v_div_scale')):
                self.wr = R[0] | R[1]; self.rd = set().union(*R[2:])
            else:
                self.wr = set(R[0]); self.rd = set().union(*R[1:]) if len(R) > 1 else set()
                if mn.startswith(('v_fmac', 'v_dot2c', 'v_writelane', 'v_pk_fmac')) or 'UNUSED_PRESERVE' in rest or self.dpp:
                    self.rd |= R[0]
                if mn.startswith('v_cndmask') and len(ops) == 3:
                    self.rd.add(('vcc', 0))
        elif mn.startswith(('buffer_', 'global_', 'flat_')):
            self.kind = 'vmem'
            self.lds = (' lds' in ' ' + rest) or '_lds_' in mn
            self.wide_store = False
            if mn in ('buffer_inv', 'buffer_wbl2'):
                pass
            elif 'load' in mn:
                if self.lds:
                    self.rd = allr | {('m0', 0)}
                else:
                    self.wr = set(R[0]); self.rd = set().union(*R[1:])
            elif 'store' in mn:
                self.rd = allr
                self.data = R[0] if mn.startswith('buffer_') else R[1]
                self.wide_store = ('x3' in mn or 'x4' in mn)
            elif 'atomic' in mn:
                self.rd = allr
                if 'sc0' in rest: self.wr = set(R[0])
            else:
                raise ValueError(text)
        elif mn.startswith('ds_'):
            self.kind = 'ds'
            if mn.startswith(('ds_read', 'ds_bpermute', 'ds_swizzle', 'ds_permute')) or '_rtn' in mn:
                self.wr = set(R[0]); self.rd = set().union(*R[1:])
            else:
                self.rd = allr
        elif mn.startswith('s_'):
            self.kind = 'salu'
            if mn.startswith(('s_cmp', 's_cbranch', 's_branch', 's_waitcnt', 's_barrier', 's_nop', 's_endpgm', 's_sleep', 's_setprio', 's_bitcmp')):
                self.rd = allr
            else:
                self.wr = set(R[0]) if R else set(); self.rd = set().union(*R[1:]) if len(R) > 1 else set()
                if 'saveexec' in mn: self.wr.add(('exec', 0))
        else:
            raise ValueError("unknown instr: " + text)

    def states(self):
        if self.is_label or self.is_dir: return 0
        if self.mn == 's_nop': return int(self.ops[0], 0) + 1
        return 1

def vonly(s): return {r for r in s if r[0] == 'v'}
def sonly(s): return {r for r in s if r[0] in ('s', 'vcc')}

def need(p, c):
    n = 0
    if p.kind == 'valu':
        w = vonly(p.wr); ws = sonly(p.wr)
        if c.kind == 'xdl' and w & c.rd: n = max(n, 2)
        if c.kind == 'valu':
            if p.trans and not c.trans and w & c.rd: n = max(n, 1)
            if p.trans and c.trans and w & c.rd: n = max(n, 1)
            if c.readlane and w & c.rd: n = max(n, 1)
            if (c.dpp or c.permlane) and w & c.rd: n = max(n, 2)
            if p.sdwa and w & (c.rd | c.wr): n = max(n, 1)
            if p.dot and (w & (c.rd | c.wr)) and not (c.mn == p.mn and not (w & set().union(*[regs_of(o) for o in c.ops[1:3]]))): n = max(n, 3)
            if ws & c.rd:
                n = max(n, 4 if (c.readlane or c.mn.startswith('v_writelane') or c.mn.startswith('v_div_fmas')) else 2)
        if c.kind in ('vmem', 'ds') and p.dot and w & c.rd: n = max(n, 3)
        if c.kind == 'vmem' and ws & c.rd: n = max(n, 5)
        if c.kind == 'salu' and ws & c.rd: n = max(n, 1)
    elif p.kind == 'xdl':
        big = p.passes == 8
        if c.kind == 'xdl':
            if p.D & c.C:
                if p.D == c.C and p.passes == c.passes: pass
                else: n = max(n, 10 if big else 6)
            if p.D & (c.A | c.B | c.idx): n = max(n, 12 if big else 8)
            if p.D & c.D and not (p.D & c.C): n = max(n, 0)
        elif c.kind == 'valu':
            if p.D & (c.rd | c.wr): n = max(n, 12 if big else 8)
            if p.C & c.wr: n = max(n, 7 if big else 3)
        elif c.kind in ('vmem', 'ds'):
            if p.D & (c.rd | c.wr): n = max(n, 12 if big else 8)
            if p.C & c.wr: n = max(n, 7 if big else 3)
    elif p.kind == 'vmem':
        if getattr(p, 'wide_store', False) and (p.data & c.wr):
            n = max(n, 2 if c.kind in ('valu', 'xdl') else 1)
    elif p.kind == 'salu':
        if ('m0', 0) in p.wr and c.kind == 'vmem' and c.lds: n = max(n, 1)
        if ('m0', 0) in p.wr and c.kind == 'ds' and 'addtid' in c.mn: n = max(n, 1)
    return n

MAXD = 13
def fix_hazards(lines, verbose=False):
    ins = [Ins(l) for l in lines]
    inserted = 0
    changed = True
    while changed:
        changed = False
        labels = {x.text.split(';')[0].strip()[:-1]: i for i, x in enumerate(ins) if x.is_label}
        jumps = {}
        for i, x in enumerate(ins):
            if x.mn.startswith(('s_branch', 's_cbranch')):
                tgt = x.ops[0]
                if tgt in labels: jumps.setdefault(labels[tgt], []).append(i)
        def preds(i):
            out = []
            if i > 0 and not (ins[i - 1].mn in ('s_branch', 's_endpgm', 's_setpc_b64')): out.append(i - 1)
            out += jumps.get(i, [])
            return out
        for i, c in enumerate(ins):
            if c.is_label or c.is_dir or c.kind == 'other': continue
            worst = 0
            stack = [(j, 0) for j in preds(i)]
            seen = {}
            while stack:
                j, d = stack.pop()
                if seen.get(j, 99) <= d: continue
                seen[j] = d
                p = ins[j]
                if not (p.is_label or p.is_dir):
                    r = need(p, c) - d
                    if r > worst: worst = r; wp = p
                d2 = d + p.states()
                if d2 < MAXD:
                    for k in preds(j): stack.append((k, d2))
            if worst > 0:
                if verbose: print(f"hazard: +{worst} before '{c.text.strip()}' (after '{wp.text.strip()}')")
                ins.insert(i, Ins(f"    s_nop {worst - 1}"))
                inserted += worst
                changed = True
                break
    return [x.text for x in ins], inserted

class Prog:
    def __init__(self):
        self.lines = []
    def __call__(self, s):
        for l in s.split('\n'):
            l = l.strip()
            if l: self.lines.append(l if l.endswith(':') or l.startswith('.') or l.startswith(';') else '    ' + l)
    def label(self, n): self.lines.append(n + ':')

def vr(a, n=1, k='v'):
    return f"{k}{a}" if n == 1 else f"{k}[{a}:{a + n - 1}]"
def ar(a, n=1): return vr(a, n, 'a')
def sr(a, n=1): return vr(a, n, 's')
```

```python
import sys
from asmlib import *

NAME = "interleave_layers__mha_block__dense_activation_silu__prompt"
KB = 1024
WS = {}
_off = 0
def alloc(n, size):
    global _off
    WS[n] = _off; _off += (size + 4095) // 4096 * 4096
alloc('XA', 2048 * KB); alloc('XB', 2048 * KB)
alloc('STA', 256 * KB); alloc('STB', 256 * KB)
alloc('WQKV', 16 * 96 * KB); alloc('WQKV_CS', 48 * KB)
alloc('W1', 14 * 128 * KB); alloc('W1_CS', 56 * KB)
alloc('WO', 8 * 64 * KB); alloc('W2', 8 * 224 * KB)
alloc('Q', 2048 * KB); alloc('K', 2048 * KB); alloc('V', 2048 * KB); alloc('O', 2048 * KB)
alloc('H', 64 * 112 * KB)
WS_BYTES = _off
LOG2E = 1.4426950408889634
import struct
def f2u(x): return struct.unpack('<I', struct.pack('<f', x))[0]

SWS = 8
def srd(p, s, ptr, nbytes):
    p(f"s_mov_b32 s{s}, s{ptr}\ns_and_b32 s{s+1}, s{ptr+1}, 0xffff\ns_mov_b32 s{s+2}, {nbytes}\ns_mov_b32 s{s+3}, 0x20000")

def wave_id(p, sdst, vtmp):
    p(f"v_lshrrev_b32 v{vtmp}, 6, v0\nv_readfirstlane_b32 s{sdst}, v{vtmp}")

kernels = []
launch = []

def gen_prep(p):
    L = 'prep'
    p.label('prep_kernel')
    p(f"s_cmp_ge_u32 s2, 248\ns_cbranch_scc1 {L}_end")
    p("s_load_dwordx4 s[36:39], s[0:1], 0\ns_load_dwordx2 s[40:41], s[0:1], 16\ns_load_dwordx4 s[44:47], s[0:1], 32\ns_load_dwordx2 s[4:5], s[0:1], 64")
    wave_id(p, 3, 1)
    p("v_and_b32 v1, 63, v0")
    p("v_lshlrev_b32 v2, 4, v1")
    p("s_waitcnt lgkmcnt(0)")
    srd(p, SWS, 4, WS_BYTES)
    p(f"s_cmp_ge_u32 s2, 184\ns_cbranch_scc1 {L}_x")
    p(f"s_cmp_ge_u32 s2, 48\ns_cbranch_scc1 {L}_n1")
    srd(p, 12, 38, 512 * 3072)
    p(f"""s_mov_b32 s16, 3072
    s_lshl_b32 s17, s2, 6
    s_mov_b32 s18, 8
    s_mov_b32 s19, 0
    s_and_b32 s23, s2, 15
    s_lshr_b32 s24, s2, 4
    s_mul_i32 s20, s23, {96 * KB}
    s_lshl_b32 s25, s24, 10
    s_add_u32 s20, s20, s25
    s_add_u32 s20, s20, {WS['WQKV']}
    s_mov_b32 s21, 3072
    s_mul_i32 s22, s23, 3072
    s_add_u32 s22, s22, s25
    s_add_u32 s22, s22, {WS['WQKV_CS']}
    s_branch {L}_w""")
    p.label(f'{L}_n1')
    p(f"s_cmp_ge_u32 s2, 104\ns_cbranch_scc1 {L}_n2")
    srd(p, 12, 44, 512 * 3584)
    p(f"""s_sub_u32 s26, s2, 48
    s_mov_b32 s16, 3584
    s_lshl_b32 s17, s26, 6
    s_mov_b32 s18, 8
    s_mov_b32 s19, 0
    s_lshr_b32 s23, s26, 2
    s_and_b32 s24, s26, 3
    s_lshl_b32 s20, s23, 17
    s_lshl_b32 s25, s24, 10
    s_add_u32 s20, s20, s25
    s_add_u32 s20, s20, {WS['W1']}
    s_mov_b32 s21, 4096
    s_lshl_b32 s22, s26, 10
    s_add_u32 s22, s22, {WS['W1_CS']}
    s_branch {L}_w""")
    p.label(f'{L}_n2')
    p(f"s_cmp_ge_u32 s2, 120\ns_cbranch_scc1 {L}_n3")
    srd(p, 12, 40, 512 * 1024)
    p(f"""s_sub_u32 s26, s2, 104
    s_mov_b32 s16, 1024
    s_lshl_b32 s17, s26, 6
    s_mov_b32 s18, 8
    s_mov_b32 s19, 0
    s_lshr_b32 s23, s26, 1
    s_and_b32 s24, s26, 1
    s_lshl_b32 s20, s23, 16
    s_lshl_b32 s25, s24, 10
    s_add_u32 s20, s20, s25
    s_add_u32 s20, s20, {WS['WO']}
    s_mov_b32 s21, 2048
    s_mov_b32 s22, 0
    s_branch {L}_w""")
    p.label(f'{L}_n3')
    srd(p, 12, 46, 1792 * 1024)
    p(f"""s_sub_u32 s26, s2, 120
    s_lshr_b32 s27, s26, 2
    s_and_b32 s28, s26, 3
    s_mov_b32 s16, 1024
    s_lshl_b32 s17, s27, 6
    s_mov_b32 s18, 7
    s_mul_i32 s19, s28, 28
    s_lshr_b32 s23, s27, 1
    s_and_b32 s24, s27, 1
    s_mul_i32 s20, s23, {224 * KB}
    s_lshl_b32 s25, s24, 10
    s_add_u32 s20, s20, s25
    s_add_u32 s20, s20, {WS['W2']}
    s_mov_b32 s21, 2048
    s_mov_b32 s22, 0""")
    p.label(f'{L}_w')
    p("""s_mul_i32 s23, s3, s18
    s_add_u32 s19, s19, s23
    v_lshrrev_b32 v3, 2, v1
    v_mul_lo_u32 v3, v3, s16
    v_and_b32 v4, 3, v1
    v_lshlrev_b32 v4, 4, v4
    v_add_u32 v3, v3, v4
    s_lshl_b32 s24, s16, 4
    s_mul_i32 s25, s19, s24
    s_add_u32 s25, s25, s17
    s_lshl_b32 s26, s3, 13
    s_mul_i32 s27, s19, s21
    s_add_u32 s27, s27, s20""")
    for i in range(8):
        if i == 7: p(f"s_cmp_eq_u32 s18, 7\ns_cbranch_scc1 {L}_w1")
        p(f"s_add_u32 m0, s26, {i * 1024}")
        p(f"buffer_load_dwordx4 v3, s[12:15], s25 offen lds")
        p(f"s_add_u32 s25, s25, s24")
    p.label(f'{L}_w1')
    p("""v_lshrrev_b32 v4, 5, v1
    v_lshlrev_b32 v4, 8, v4
    v_bfe_u32 v5, v1, 2, 2
    v_lshl_add_u32 v4, v5, 6, v4
    v_bfe_u32 v5, v1, 4, 1
    v_lshl_add_u32 v4, v5, 5, v4
    v_and_b32 v5, 3, v1
    v_lshl_add_u32 v4, v5, 3, v4
    v_add_u32 v4, s26, v4
    v_mov_b32 v6, 0
    s_waitcnt vmcnt(0)""")
    for i in range(8):
        if i == 7: p(f"s_cmp_eq_u32 s18, 7\ns_cbranch_scc1 {L}_w2")
        b = 8 + 4 * i
        p(f"ds_read_b64_tr_b16 v[{b}:{b+1}], v4 offset:{i*1024}\nds_read_b64_tr_b16 v[{b+2}:{b+3}], v4 offset:{i*1024+512}")
        p("s_waitcnt lgkmcnt(0)")
        p(f"buffer_store_dwordx4 v[{b}:{b+3}], v2, s[8:11], s27 offen")
        p("s_add_u32 s27, s27, s21")
        for r in range(4):
            p(f"v_lshlrev_b32 v7, 16, v{b+r}\nv_add_f32 v6, v6, v7\nv_and_b32 v7, 0xffff0000, v{b+r}\nv_add_f32 v6, v6, v7")
    p.label(f'{L}_w2')
    p(f"s_cmp_eq_u32 s22, 0\ns_cbranch_scc1 {L}_end")
    p(f"""v_lshlrev_b32 v7, 2, v0
    ds_write_b32 v7, v6 offset:32768
    s_waitcnt lgkmcnt(0)
    s_barrier
    s_cmp_lg_u32 s3, 0
    s_cbranch_scc1 {L}_end
    v_and_b32 v7, 31, v1
    v_lshlrev_b32 v7, 2, v7""")
    for i in range(8): p(f"ds_read_b32 v{40+i}, v7 offset:{32768 + 128 * i}")
    p("s_waitcnt lgkmcnt(0)")
    for i in range(1, 8): p(f"v_add_f32 v40, v40, v{40+i}")
    p("""v_mov_b32 v50, 0
    v_mov_b32 v51, 0
    v_cvt_pk_bf16_f32 v49, v40, v50
    v_lshlrev_b32 v41, 16, v49
    v_sub_f32 v41, v40, v41
    v_cvt_pk_bf16_f32 v48, v40, v41
    v_cmp_gt_u32 vcc, 32, v1
    v_cndmask_b32 v48, 0, v48, vcc
    v_cndmask_b32 v49, 0, v49, vcc
    buffer_store_dwordx4 v[48:51], v2, s[8:11], s22 offen""")
    p(f"s_branch {L}_end")
    p.label(f'{L}_x')
    srd(p, 12, 36, 2048 * 1024)
    p(f"""s_sub_u32 s16, s2, 184
    v_and_b32 v3, 31, v1
    v_lshrrev_b32 v4, 5, v1
    v_lshlrev_b32 v5, 10, v3
    v_lshl_add_u32 v5, v4, 3, v5
    s_lshl_b32 s17, s16, 15
    s_lshl_b32 s18, s3, 8
    s_add_u32 s18, s18, s17
    s_lshl_b32 s19, s3, 13
    s_add_u32 s19, s19, s17
    s_add_u32 s19, s19, {WS['XA']}
    s_add_u32 s20, s19, 4096
    s_lshl_b32 s21, s16, 12
    s_lshl_b32 s22, s3, 4
    s_add_u32 s21, s21, s22
    s_add_u32 s21, s21, {WS['STA']}
    v_lshlrev_b32 v6, 6, v1""")
    for i in range(8):
        b = 8 + 4 * i
        p(f"buffer_load_dwordx2 v[{b}:{b+1}], v5, s[12:15], s18 offen offset:{32*i}\nbuffer_load_dwordx2 v[{b+2}:{b+3}], v5, s[12:15], s18 offen offset:{32*i+16}")
    p("s_waitcnt vmcnt(0)")
    for i in range(8):
        b = 8 + 4 * i
        p(f"buffer_store_dwordx4 v[{b}:{b+3}], v2, s[8:11], s{19 + i // 4} offen offset:{(i % 4) * 1024}")
    for c in range(4):
        p(f"v_mov_b32 v{44+c}, 0\nv_mov_b32 v49, 0")
        for r in range(8):
            x = 8 + 8 * c + r
            p(f"v_lshlrev_b32 v7, 16, v{x}\nv_add_f32 v{44+c}, v{44+c}, v7\nv_fmac_f32 v49, v7, v7\nv_and_b32 v7, 0xffff0000, v{x}\nv_add_f32 v{44+c}, v{44+c}, v7\nv_fmac_f32 v49, v7, v7")
        p(f"v_permlane32_swap_b32 v{44+c}, v49\nv_add_f32 v{44+c}, v{44+c}, v49")
    p("buffer_store_dwordx4 v[44:47], v6, s[8:11], s21 offen")
    p.label(f'{L}_end')
    p("s_endpgm")
    kernels.append(('prep_kernel', 64, 0))

def ln_stats(p, st, mean, rstd, sig=None):
    for d in (8, 4, 2, 1):
        for i in range(d): p(f"v_add_f32 v{st+i}, v{st+i}, v{st+i+d}")
    p(f"""v_mov_b32 v{st+1}, v{st}
    v_permlane32_swap_b32 v{st}, v{st+1}
    v_mul_f32 v{mean}, {1/512!r}, v{st}
    v_mul_f32 v{st+1}, {1/512!r}, v{st+1}
    v_fma_f32 v{st+1}, -v{mean}, v{mean}, v{st+1}
    v_max_f32 v{st+1}, 0, v{st+1}
    v_add_f32 v{st+1}, 0x{f2u(1e-5):08x}, v{st+1}
    v_rsq_f32 v{rstd}, v{st+1}""")
    if sig is not None: p(f"v_sqrt_f32 v{sig}, v{st+1}")

def nm_frag(p, mean, f, tmp):
    p(f"""v_sub_f32 v{tmp}, 0, v{mean}
    v_mov_b32 v{f+2}, 0
    v_mov_b32 v{f+3}, 0
    v_cvt_pk_bf16_f32 v{f}, v{tmp}, v{tmp}
    v_lshlrev_b32 v{f+1}, 16, v{f}
    v_sub_f32 v{tmp}, v{tmp}, v{f+1}
    v_cvt_pk_bf16_f32 v{f+1}, v{tmp}, v{f+2}""")

def gen_rowgemm(p, L, NT, ncb, wname, epilogue):
    p.label(f'{L}_common')
    nwg = 16 * ncb
    p(f"s_cmp_ge_u32 s2, {nwg}\ns_cbranch_scc1 {L}_end")
    p("s_load_dwordx2 s[4:5], s[0:1], 64")
    wave_id(p, 3, 1)
    p("v_and_b32 v1, 63, v0\nv_lshlrev_b32 v2, 4, v1")
    p(f"""s_and_b32 s12, s2, 7
    s_lshr_b32 s13, s2, 3
    s_and_b32 s14, s12, 3
    s_lshl_b32 s14, s14, 2
    s_and_b32 s15, s13, 3
    s_add_u32 s14, s14, s15
    s_lshr_b32 s15, s12, 2
    s_mul_i32 s15, s15, {ncb // 2}
    s_lshr_b32 s13, s13, 2
    s_add_u32 s15, s15, s13
    s_lshl_b32 s16, s14, 2
    s_add_u32 s16, s16, s3""")
    slice_b = NT * 32 * KB
    p(f"""s_lshl_b32 s17, s16, 15
    s_add_u32 s17, s17, s30
    s_mul_i32 s18, s15, {slice_b}
    s_add_u32 s18, s18, {WS[wname]}
    s_lshl_b32 s19, s3, 12
    s_add_u32 s18, s18, s19
    s_mul_i32 s20, s15, {NT * KB}
    s_add_u32 s20, s20, {WS[wname + '_CS']}
    s_lshl_b32 s21, s16, 12
    s_add_u32 s21, s21, s31
    v_lshlrev_b32 v3, 6, v1
    s_waitcnt lgkmcnt(0)""")
    srd(p, SWS, 4, WS_BYTES)
    nround = NT * 32 // 16
    avail = [min(32, 16 * (r + 1) // NT) for r in range(nround)]
    issued = []
    xk = 0
    for r in range(nround):
        p(f"s_add_u32 m0, s19, {r * 16384}")
        for i in range(4):
            p(f"buffer_load_dwordx4 v2, s[8:11], s18 offen offset:{i*1024} lds"); issued.append(('W', r))
        p("s_add_u32 s18, s18, 16384")
        while xk < avail[r]:
            p(f"buffer_load_dwordx4 a[{4*xk}:{4*xk+3}], v2, s[8:11], s17 offen offset:{(xk % 4) * 1024}"); issued.append(('X', xk))
            if xk % 4 == 3: p("s_add_u32 s17, s17, 4096")
            xk += 1
    ACC = 16; WB = ACC + 16 * NT; ST = WB + 8 * NT; CS = 128
    late = False
    def wait_round(r):
        last = max(i for i, t in enumerate(issued) if t == ('W', r) or (t[0] == 'X' and t[1] < avail[r]))
        p(f"s_waitcnt vmcnt({min(63, len(issued) - 1 - last)})\ns_barrier")
    def reads(kb):
        for j in range(NT):
            b = WB + (kb % 2) * 4 * NT + 4 * j
            p(f"ds_read_b128 v[{b}:{b+3}], v{4 if kb * NT + j >= 64 else 2} offset:{((kb * NT + j) % 64) * 1024}")
    p("v_add_u32 v4, 0x10000, v2")
    wait_round(0); rnd = 1
    reads(0)
    for kb in range(32):
        if kb == 1:
            for j in range(NT):
                p(f"buffer_load_dwordx4 a[{CS+4*j}:{CS+4*j+3}], v2, s[8:11], s20 offen offset:{j*1024}"); issued.append(('C', j))
            for i in range(4):
                p(f"buffer_load_dwordx4 v[{ST+4*i}:{ST+4*i+3}], v3, s[8:11], s21 offen offset:{16*i}"); issued.append(('S', i))
        if kb + 1 < 32:
            if kb + 1 == avail[rnd - 1]:
                wait_round(rnd); rnd += 1
            reads(kb + 1)
            p(f"s_waitcnt lgkmcnt({NT})")
        else:
            p("s_waitcnt lgkmcnt(0)")
        for j in range(NT):
            b = WB + (kb % 2) * 4 * NT + 4 * j
            acc = vr(ACC + 16 * j, 16); c = acc if kb else '0'
            w = vr(b, 4); x = ar(4 * kb, 4)
            if L == 'qkv' and j == 2: p(f"v_mfma_f32_32x32x16_bf16 {acc}, {x}, {w}, {c}")
            else: p(f"v_mfma_f32_32x32x16_bf16 {acc}, {w}, {x}, {c}")
    p("s_waitcnt vmcnt(0)")
    MEAN, RSTD, SIG, NM = 5, 6, 7, 8
    ln_stats(p, ST, MEAN, RSTD, SIG)
    nm_frag(p, MEAN, NM, 12)
    for j in range(NT):
        acc = vr(ACC + 16 * j, 16); w = ar(CS + 4 * j, 4); x = vr(NM, 4)
        if L == 'qkv' and j == 2: p(f"v_mfma_f32_32x32x16_bf16 {acc}, {x}, {w}, {acc}")
        else: p(f"v_mfma_f32_32x32x16_bf16 {acc}, {w}, {x}, {acc}")
    epilogue(p, ACC, WB, MEAN, RSTD, SIG)
    p.label(f'{L}_end')
    p("s_endpgm")
    return ST + 16

def epi_qkv(p, ACC, T, MEAN, RSTD, SIG):
    p(f"""s_lshl_b32 s22, s3, 7
    s_add_u32 s22, s22, 98304
    v_and_b32 v12, 31, v1
    v_lshrrev_b32 v13, 5, v1
    v_lshl_add_u32 v14, v12, 2, s22
    ds_write_b32 v14, v{RSTD}
    v_lshl_add_u32 v14, v13, 4, s22
    s_waitcnt lgkmcnt(0)""")
    for g in range(4): p(f"ds_read_b128 v[{T+4*g}:{T+4*g+3}], v14 offset:{32*g}")
    p(f"v_mul_f32 v{SIG}, 0x{f2u(0.25 * LOG2E):08x}, v{RSTD}")
    p(f"""s_lshl_b32 s23, s15, 17
    s_lshl_b32 s24, s16, 10
    s_add_u32 s23, s23, s24
    s_add_u32 s24, s23, {WS['Q']}
    s_add_u32 s25, s24, 65536
    s_add_u32 s26, s23, {WS['K']}
    s_add_u32 s27, s26, 65536
    s_add_u32 s28, s23, {WS['V']}""")
    p("""v_and_b32 v3, 0x33, v1
    v_bfe_u32 v14, v1, 2, 1
    v_lshl_or_b32 v3, v14, 3, v3
    v_bfe_u32 v14, v1, 3, 1
    v_lshl_or_b32 v3, v14, 2, v3
    v_lshlrev_b32 v3, 4, v3
    v_bfe_u32 v14, v1, 4, 1
    v_lshlrev_b32 v4, 16, v14
    v_lshl_add_u32 v4, v13, 8, v4
    v_and_b32 v14, 15, v1
    v_lshl_add_u32 v4, v14, 4, v4""")
    for j, sc, va, s0 in ((0, SIG, 2, 24), (1, RSTD, 3, 26)):
        a = ACC + 16 * j
        for hh in range(2):
            for r in range(8): p(f"v_mul_f32 v{a+8*hh+r}, v{a+8*hh+r}, v{sc}")
            for r in range(4): p(f"v_cvt_pk_bf16_f32 v{a+8*hh+r}, v{a+8*hh+2*r}, v{a+8*hh+2*r+1}")
            p(f"buffer_store_dwordx4 v[{a+8*hh}:{a+8*hh+3}], v{va}, s[8:11], s{s0+hh} offen")
    a = ACC + 32
    p("s_waitcnt lgkmcnt(0)")
    for hh in range(2):
        for r in range(8): p(f"v_mul_f32 v{a+8*hh+r}, v{a+8*hh+r}, v{T+8*hh+r}")
        for r in range(4): p(f"v_cvt_pk_bf16_f32 v{a+8*hh+r}, v{a+8*hh+2*r}, v{a+8*hh+2*r+1}")
        p(f"buffer_store_dwordx4 v[{a+8*hh}:{a+8*hh+3}], v4, s[8:11], s28 offen offset:{512*hh}")

def epi_w1(p, ACC, T, MEAN, RSTD, SIG):
    p(f"""v_mul_f32 v{RSTD}, 0x{f2u(-LOG2E):08x}, v{RSTD}
    s_mul_i32 s23, s16, {112 * KB}
    s_lshl_b32 s24, s15, 13
    s_add_u32 s23, s23, s24
    s_add_u32 s23, s23, {WS['H']}
    s_add_u32 s24, s23, 4096""")
    for j in range(4):
        a = ACC + 16 * j
        for r in range(16): p(f"v_mul_f32 v{T+r}, v{a+r}, v{RSTD}")
        for r in range(16): p(f"v_exp_f32 v{T+r}, v{T+r}")
        for r in range(16): p(f"v_fma_f32 v{T+r}, v{T+r}, v{SIG}, v{SIG}")
        for r in range(16): p(f"v_rcp_f32 v{T+r}, v{T+r}")
        for r in range(16): p(f"v_mul_f32 v{a+r}, v{a+r}, v{T+r}")
        for hh in range(2):
            for r in range(4): p(f"v_cvt_pk_bf16_f32 v{a+8*hh+r}, v{a+8*hh+2*r}, v{a+8*hh+2*r+1}")
            k = 2 * j + hh
            p(f"buffer_store_dwordx4 v[{a+8*hh}:{a+8*hh+3}], v2, s[8:11], s{23 + k // 4} offen offset:{(k % 4) * 1024}")

def gen_splitk(p, L, KBT, xname, wname, ring, final_variant):
    p.label(f'{L}_common')
    p(f"s_cmp_ge_u32 s2, 256\ns_cbranch_scc1 {L}_end")
    p("s_load_dwordx2 s[4:5], s[0:1], 64\ns_load_dwordx2 s[6:7], s[0:1], 48")
    wave_id(p, 3, 1)
    p("v_and_b32 v1, 63, v0\nv_lshlrev_b32 v2, 4, v1")
    KW = KBT // 4
    p(f"""s_and_b32 s12, s2, 7
    s_lshr_b32 s13, s2, 3
    s_lshl_b32 s14, s12, 2
    s_and_b32 s15, s13, 3
    s_add_u32 s14, s14, s15
    s_lshr_b32 s15, s13, 2
    s_mul_i32 s17, s14, {2 * KBT * KB}
    s_mul_i32 s16, s3, {KW * KB}
    s_add_u32 s17, s17, s16
    s_add_u32 s17, s17, {WS[xname]}
    s_add_u32 s18, s17, {KBT * KB}
    s_mul_i32 s19, s15, {2 * KBT * KB}
    s_lshl_b32 s16, s16, 1
    s_add_u32 s19, s19, s16
    s_add_u32 s19, s19, {WS[wname]}
    s_lshr_b32 s20, s3, 1
    s_lshl_b32 s21, s14, 1
    s_add_u32 s20, s20, s21
    s_and_b32 s21, s3, 1
    s_lshl_b32 s22, s15, 1
    s_add_u32 s21, s21, s22
    s_lshl_b32 s22, s20, 15
    s_lshl_b32 s23, s21, 11
    s_add_u32 s22, s22, s23
    s_add_u32 s23, s22, s30
    s_waitcnt lgkmcnt(0)""")
    srd(p, SWS, 4, WS_BYTES)
    ACC = 16; RES = 80
    def loads(k):
        b = (k % ring) * 16
        p(f"buffer_load_dwordx4 a[{b}:{b+3}], v2, s[8:11], s17 offen offset:{(k % 4) * 1024}")
        p(f"buffer_load_dwordx4 a[{b+4}:{b+7}], v2, s[8:11], s19 offen offset:{(k % 2) * 2048}")
        p(f"buffer_load_dwordx4 a[{b+8}:{b+11}], v2, s[8:11], s19 offen offset:{(k % 2) * 2048 + 1024}")
        p(f"buffer_load_dwordx4 a[{b+12}:{b+15}], v2, s[8:11], s18 offen offset:{(k % 4) * 1024}")
        if k % 4 == 3: p("s_add_u32 s17, s17, 4096\ns_add_u32 s18, s18, 4096")
        if k % 2 == 1: p("s_add_u32 s19, s19, 4096")
    nl = min(ring, KW)
    for k in range(nl): loads(k)
    p(f"buffer_load_dwordx4 v[{RES}:{RES+3}], v2, s[8:11], s23 offen\nbuffer_load_dwordx4 v[{RES+4}:{RES+7}], v2, s[8:11], s23 offen offset:1024")
    res_pos = nl
    for k in range(KW):
        issued_steps = min(KW, nl + k)
        after = (issued_steps - 1 - k) * 4 + (2 if k < res_pos else 0)
        p(f"s_waitcnt vmcnt({after})")
        b = (k % ring) * 16
        for t in range(2):
            for j in range(2):
                acc = vr(ACC + 16 * (2 * t + j), 16)
                p(f"v_mfma_f32_32x32x16_bf16 {acc}, {ar(b + 4 + 4 * j, 4)}, {ar(b + 12 * t, 4)}, {acc if k else '0'}")
        if nl + k < KW: loads(nl + k)
    p("v_mov_b32 v3, v2")
    for d in range(4):
        p(f"s_cmp_eq_u32 s3, {d}\ns_cbranch_scc1 {L}_sk{d}")
        p(f"s_sub_u32 s24, s3, {d + 1}\ns_and_b32 s24, s24, 3\ns_lshl_b32 s24, s24, 12\ns_add_u32 s24, s24, {d * 12288}\nv_add_u32 v3, s24, v2")
        for q in range(4): p(f"ds_write_b128 v3, v[{ACC+16*d+4*q}:{ACC+16*d+4*q+3}] offset:{q*1024}")
        p.label(f'{L}_sk{d}')
    OWN = 96
    for d in range(4):
        p(f"s_cmp_lg_u32 s3, {d}\ns_cbranch_scc1 {L}_mv{d}")
        for r in range(16): p(f"v_mov_b32 v{OWN+r}, v{ACC+16*d+r}")
        p.label(f'{L}_mv{d}')
    p("s_mul_i32 s24, s3, 12288\nv_add_u32 v3, s24, v2\ns_waitcnt lgkmcnt(0)\ns_barrier")
    for s in range(3):
        for q in range(4): p(f"ds_read_b128 v[{ACC+16*s+4*q}:{ACC+16*s+4*q+3}], v3 offset:{s*4096+q*1024}")
    for r in range(8):
        p(f"v_lshlrev_b32 v4, 16, v{RES+r}\nv_add_f32 v{OWN+2*r}, v{OWN+2*r}, v4\nv_and_b32 v4, 0xffff0000, v{RES+r}\nv_add_f32 v{OWN+2*r+1}, v{OWN+2*r+1}, v4")
    for s in range(3):
        p(f"s_waitcnt lgkmcnt({8 - 4 * s})")
        for r in range(16): p(f"v_add_f32 v{OWN+r}, v{OWN+r}, v{ACC+16*s+r}")
    for r in range(8): p(f"v_cvt_pk_bf16_f32 v{RES+r}, v{OWN+2*r}, v{OWN+2*r+1}")
    if final_variant:
        p(f"s_cmp_eq_u32 s33, 1\ns_cbranch_scc1 {L}_final")
    p(f"""s_add_u32 s23, s22, s31
    buffer_store_dwordx4 v[{RES}:{RES+3}], v2, s[8:11], s23 offen
    buffer_store_dwordx4 v[{RES+4}:{RES+7}], v2, s[8:11], s23 offen offset:1024
    v_mul_f32 v5, v{OWN}, v{OWN}""")
    for r in range(1, 16): p(f"v_fmac_f32 v5, v{OWN+r}, v{OWN+r}")
    for d in (8, 4, 2, 1):
        for i in range(d): p(f"v_add_f32 v{OWN+i}, v{OWN+i}, v{OWN+i+d}")
    p(f"""v_lshlrev_b32 v6, 6, v1
    s_lshl_b32 s24, s20, 12
    s_lshl_b32 s25, s21, 2
    s_add_u32 s24, s24, s25
    s_add_u32 s24, s24, s32
    v_permlane32_swap_b32 v{OWN}, v5
    v_add_f32 v5, v{OWN}, v5
    buffer_store_dword v5, v6, s[8:11], s24 offen""")
    if final_variant:
        p(f"s_branch {L}_end")
        p.label(f'{L}_final')
        srd(p, 12, 6, 2048 * 1024)
        p(f"""v_and_b32 v4, 31, v1
        v_lshlrev_b32 v4, 10, v4
        v_lshrrev_b32 v5, 5, v1
        v_lshl_add_u32 v4, v5, 4, v4
        s_lshl_b32 s24, s20, 15
        s_lshl_b32 s25, s21, 6
        s_add_u32 s24, s24, s25""")
        for g in (0, 2):
            p(f"v_permlane32_swap_b32 v{RES+2*g}, v{RES+2*g+2}\nv_permlane32_swap_b32 v{RES+2*g+1}, v{RES+2*g+3}")
            p(f"buffer_store_dwordx4 v[{RES+2*g}:{RES+2*g+3}], v4, s[12:15], s24 offen offset:{16*g}")
    p.label(f'{L}_end')
    p("s_endpgm")

def gen_att(p):
    L = 'att'
    p.label('att_kernel')
    p(f"s_cmp_ge_u32 s2, 256\ns_cbranch_scc1 {L}_end")
    p("s_load_dwordx2 s[4:5], s[0:1], 64")
    wave_id(p, 3, 1)
    p("v_and_b32 v1, 63, v0\nv_lshlrev_b32 v2, 4, v1")
    p(f"""s_and_b32 s12, s2, 7
    s_lshl_b32 s12, s12, 2
    s_bfe_u32 s13, s2, 0x20003
    s_add_u32 s12, s12, s13
    s_lshr_b32 s13, s2, 5
    s_lshl_b32 s14, s12, 16
    s_lshl_b32 s15, s13, 13
    s_add_u32 s16, s14, s15
    s_add_u32 s16, s16, {WS['Q']}
    s_lshl_b32 s15, s3, 14
    s_add_u32 s14, s14, s15
    s_add_u32 s17, s14, {WS['K']}
    s_add_u32 s18, s14, {WS['V']}
    v_lshrrev_b32 v3, 5, v1
    v_and_b32 v4, 15, v1
    v_lshlrev_b32 v4, 4, v4
    v_lshl_add_u32 v3, v3, 8, v4
    s_mov_b32 s20, 0x0000ffff
    s_mov_b32 s21, 0x0000ffff
    s_waitcnt lgkmcnt(0)""")
    srd(p, SWS, 4, WS_BYTES)
    Q, QN, IDX, OA, O, S = 8, 12, 5, 6, 16, 32
    KA, VA = 0, 64
    p(f"buffer_load_dwordx4 v[{Q}:{Q+3}], v2, s[8:11], s16 offen")
    for t in range(16):
        p(f"buffer_load_dwordx4 a[{KA+4*t}:{KA+4*t+3}], v2, s[8:11], s17 offen offset:{(t % 4) * 1024}")
        p("s_mov_b64 exec, s[20:21]")
        p(f"buffer_load_dwordx4 a[{VA+8*t}:{VA+8*t+3}], v3, s[8:11], s18 offen offset:{(t % 4) * 1024}")
        p(f"buffer_load_dwordx4 a[{VA+8*t+4}:{VA+8*t+7}], v3, s[8:11], s18 offen offset:{(t % 4) * 1024 + 512}")
        p("s_mov_b64 exec, -1")
        if t % 4 == 3: p("s_add_u32 s17, s17, 4096\ns_add_u32 s18, s18, 4096")
    p("v_mov_b32 v16, 0\nv_mov_b32 v17, 0\nv_mov_b32 v18, 0\nv_mov_b32 v19, 0\nv_lshlrev_b32 v4, 4, v0")
    for i in range(4): p(f"ds_write_b128 v4, v[16:19] offset:{i*4096}")
    p("v_lshlrev_b32 v4, 3, v0\nds_write_b64 v4, v[16:17] offset:16384")
    p(f"v_mov_b32 v{IDX}, 0xdddddddd\nv_lshlrev_b32 v{OA}, 2, v1\nv_mov_b32 v7, 0x3f803f80")
    p("s_not_b64 exec, s[20:21]")
    for r in range(128): p(f"v_accvgpr_write_b32 a{VA+r}, v7")
    p("s_mov_b64 exec, -1")
    p("v_mov_b32 v112, 0\nv_mov_b32 v113, 0")
    ZERO = f"v_mfma_f32_32x32x8_bf16 {vr(O,16)}, v[112:113], v[112:113], 0"
    p("s_waitcnt lgkmcnt(0)\ns_barrier")
    def QK(t, c='0'): return f"v_mfma_f32_32x32x16_bf16 {vr(S+16*(t%4),16)}, {ar(KA+4*(t%16),4)}, {vr(Q,4)}, {c}"
    def PV(t, hh): return f"v_smfmac_f32_32x32x32_bf16 {vr(O,16)}, {ar(VA+8*(t%16)+4*hh,4)}, {vr(S+16*(t%4)+8*hh,8)}, v{IDX}"
    p(ZERO)
    p("s_mov_b32 s19, 0")
    p("s_waitcnt vmcnt(44)")
    p(QK(0)); p(QK(1)); p('s_nop 9')
    p.label(f'{L}_loop')
    for t in range(16):
        ex = [f"v_exp_f32 v{S+16*(t%4)+i}, v{S+16*(t%4)+i}" for i in range(16)]
        ins = {i: [] for i in range(17)}
        if t == 0:
            ins[0].append("s_add_u32 s16, s16, 1024")
            ins[1].append(f"buffer_load_dwordx4 v[{QN}:{QN+3}], v2, s[8:11], s16 offen")
            ins[2].append("s_waitcnt vmcnt(40)")
            ins[3].append(QK(2))
            ins[10].append(PV(0, 0))
        else:
            ins[2].append(PV(t - 1, 1))
            if t % 4 == 2 and t + 2 < 16:
                last = min(15, t + 5)
                ins[4].append(f"s_waitcnt vmcnt({1 + 3 * (15 - last)})")
            if t == 1: ins[4].append(f"s_waitcnt vmcnt({1 + 3 * (15 - 3)})")
            if t == 13:
                ins[5].append(QK(15))
                ins[7].append("s_waitcnt vmcnt(0)")
                for i in range(4): ins[8 + i].append(f"v_mov_b32 v{Q+i}, v{QN+i}")
            else:
                ins[5].append(QK(t + 2))
            ins[10].append(PV(t, 0))
        for i in range(16):
            for x in ins[i]: p(x)
            p(ex[i])
    p("s_add_u32 s19, s19, 1\ns_cmp_lt_u32 s19, 8")
    p(PV(15, 1))
    p("s_nop 11")
    for r in range(9): p(f"ds_add_f32 v{OA}, v{O+r} offset:{256*r}")
    p(ZERO)
    p(f"v_add_u32 v{OA}, 2304, v{OA}")
    p(f"s_cbranch_scc1 {L}_loop")
    p("s_waitcnt lgkmcnt(0)\ns_barrier")
    p("v_lshlrev_b32 v4, 2, v1")
    for q in range(8): p(f"ds_read_b32 v{32+q}, v4 offset:{q*2304+2048}")
    p(f"s_mov_b32 s22, 0x{f2u(2.0**-60):08x}\ns_mov_b32 s23, 0x{f2u(2.0**60):08x}\ns_waitcnt lgkmcnt(0)")
    p("v_min3_f32 v40, v32, v33, v34\nv_min3_f32 v40, v40, v35, v36\nv_min3_f32 v40, v40, v37, v38\nv_min_f32 v40, v40, v39")
    for q in range(1, 8): p(f"v_add_f32 v32, v32, v{32+q}")
    p(f"""v_cmp_le_f32 vcc, s22, v40
    v_cmp_ge_f32 s[24:25], s23, v32
    s_and_b64 s[24:25], s[24:25], vcc
    s_cmp_eq_u64 s[24:25], -1
    s_cbranch_scc0 {L}_slow""")
    p.label(f'{L}_fin')
    p(f"""s_mul_i32 s24, s3, 4608
    v_lshl_add_u32 v4, v1, 2, s24
    s_lshl_b32 s25, s13, 18
    s_lshl_b32 s26, s3, 16
    s_add_u32 s25, s25, s26
    s_lshl_b32 s26, s12, 10
    s_add_u32 s25, s25, s26
    s_add_u32 s25, s25, {WS['O']}
    s_add_u32 s26, s25, 32768""")
    for b in range(2):
        for r in range(9): p(f"ds_read_b32 v{32+16*b+r}, v4 offset:{b*2304+256*r}")
    for b in range(2):
        a = 32 + 16 * b
        p(f"s_waitcnt lgkmcnt({9 if b == 0 else 0})")
        p(f"v_rcp_f32 v{a+8}, v{a+8}")
        for r in range(8): p(f"v_mul_f32 v{a+r}, v{a+r}, v{a+8}")
        for r in range(4): p(f"v_cvt_pk_bf16_f32 v{a+r}, v{a+2*r}, v{a+2*r+1}")
        p(f"buffer_store_dwordx4 v[{a}:{a+3}], v2, s[8:11], s{25+b} offen")
    p.label(f'{L}_end')
    p("s_endpgm")
    p.label(f'{L}_slow')
    NEG = 96
    p("s_barrier")
    p("v_mov_b32 v16, 0\nv_mov_b32 v17, 0\nv_mov_b32 v18, 0\nv_mov_b32 v19, 0\nv_lshlrev_b32 v4, 4, v0")
    for i in range(4): p(f"ds_write_b128 v4, v[16:19] offset:{i*4096}")
    p("v_lshlrev_b32 v4, 3, v0\nds_write_b64 v4, v[16:17] offset:16384")
    p("v_mov_b32 v7, 0xff800000\nv_lshlrev_b32 v4, 2, v0\nds_write_b32 v4, v7 offset:18432")
    p("s_waitcnt lgkmcnt(0)\ns_barrier")
    p("s_sub_u32 s16, s16, 8192\ns_mov_b32 s19, 0\nv_and_b32 v4, 31, v1\nv_lshlrev_b32 v4, 2, v4")
    p.label(f'{L}_s1')
    p(f"buffer_load_dwordx4 v[{Q}:{Q+3}], v2, s[8:11], s16 offen\nv_mov_b32 v7, 0xff800000\ns_waitcnt vmcnt(0)")
    for t in range(16):
        p(QK(t))
        for i in range(0, 16, 2): p(f"v_max3_f32 v7, v7, v{S+16*(t%4)+i}, v{S+16*(t%4)+i+1}")
    p(f"""ds_max_f32 v4, v7 offset:18432
    v_add_u32 v4, 128, v4
    s_add_u32 s16, s16, 1024
    s_add_u32 s19, s19, 1
    s_cmp_lt_u32 s19, 8
    s_cbranch_scc1 {L}_s1
    s_waitcnt lgkmcnt(0)
    s_barrier
    s_sub_u32 s16, s16, 8192
    s_mov_b32 s19, 0
    v_and_b32 v4, 31, v1
    v_lshlrev_b32 v4, 2, v4
    v_lshlrev_b32 v{OA}, 2, v1""")
    p.label(f'{L}_s2')
    p(f"buffer_load_dwordx4 v[{Q}:{Q+3}], v2, s[8:11], s16 offen\nds_read_b32 v7, v4 offset:18432\ns_waitcnt vmcnt(0) lgkmcnt(0)")
    for r in range(16): p(f"v_sub_f32 v{NEG+r}, 0, v7")
    p(ZERO)
    for t in range(16):
        p(QK(t, vr(NEG, 16)))
        for i in range(16): p(f"v_exp_f32 v{S+16*(t%4)+i}, v{S+16*(t%4)+i}")
        p(PV(t, 0)); p(PV(t, 1))
    for r in range(9): p(f"ds_add_f32 v{OA}, v{O+r} offset:{256*r}")
    p(f"""v_add_u32 v{OA}, 2304, v{OA}
    v_add_u32 v4, 128, v4
    s_add_u32 s16, s16, 1024
    s_add_u32 s19, s19, 1
    s_cmp_lt_u32 s19, 8
    s_cbranch_scc1 {L}_s2
    s_waitcnt lgkmcnt(0)
    s_barrier
    s_branch {L}_fin""")
    kernels.append(('att_kernel', 116, 192))

def stub(p, name, common, sregs, nv, na):
    p(".p2align 8")
    p.label(name)
    for s, v in sregs.items(): p(f"s_mov_b32 s{s}, {v}")
    p(f"s_branch {common}")
    kernels.append((name, nv, na))

def build(extra_dummy=0):
    p = Prog()
    p(".p2align 8"); gen_prep(p)
    p(".p2align 8"); gen_att(p)
    stub(p, 'qkv_kernel', 'qkv_common', {30: WS['XA'], 31: WS['STA']}, 112, 140)
    p(".p2align 6"); gen_rowgemm(p, 'qkv', 3, 16, 'WQKV', epi_qkv)
    stub(p, 'w1_kernel', 'w1_common', {30: WS['XB'], 31: WS['STB']}, 128, 144)
    p(".p2align 6"); gen_rowgemm(p, 'w1', 4, 14, 'W1', epi_w1)
    stub(p, 'wo_kernel', 'wo_common', {30: WS['XA'], 31: WS['XB'], 32: WS['STB']}, 112, 128)
    p(".p2align 6"); gen_splitk(p, 'wo', 32, 'O', 'WO', 8, False)
    stub(p, 'w2a_kernel', 'w2_common', {30: WS['XB'], 31: WS['XA'], 32: WS['STA'], 33: 0}, 112, 224)
    stub(p, 'w2b_kernel', 'w2_common', {30: WS['XB'], 31: WS['XA'], 32: WS['STA'], 33: 1}, 112, 224)
    p(".p2align 6"); gen_splitk(p, 'w2', 112, 'H', 'W2', 14, True)
    if extra_dummy:
        p(".p2align 8"); p.label('nop_kernel'); p("s_endpgm"); kernels.append(('nop_kernel', 8, 0))
    body, nops = fix_hazards(p.lines, verbose=('-v' in sys.argv))
    print("inserted wait states:", nops, file=sys.stderr)
    seq = [('prep_kernel', 248, 33 * KB + 1024)]
    for l in range(2):
        seq += [('qkv_kernel', 256, 98304 + 512), ('att_kernel', 256, 18432 + 1024), ('wo_kernel', 256, 49152),
                ('w1_kernel', 224, 131072), ('w2a_kernel' if l == 0 else 'w2b_kernel', 256, 49152)]
    seq += [('nop_kernel', 256, 0)] * extra_dummy
    out = []
    for k, g, lds in seq: out.append(f"; @launch kernel={k} grid=({g},1,1) block=(256,1,1) lds={lds}")
    out.append('.amdgcn_target "amdgcn-amd-amdhsa--gfx950"\n.text')
    for k, _, _ in kernels: out.append(f".globl {k}\n.type {k},@function")
    out += body
    out.append('.section .rodata,"a"')
    for k, nv, na in kernels:
        nv4 = (nv + 3) // 4 * 4
        out.append(f""".p2align 6
.amdhsa_kernel {k}
  .amdhsa_next_free_vgpr {nv4 + na}
  .amdhsa_next_free_sgpr 64
  .amdhsa_accum_offset {nv4}
  .amdhsa_group_segment_fixed_size 0
  .amdhsa_kernarg_size 72
  .amdhsa_user_sgpr_count 2
  .amdhsa_user_sgpr_kernarg_segment_ptr 1
  .amdhsa_system_sgpr_workgroup_id_x 1
.end_amdhsa_kernel""")
    return "\n".join(out) + "\n"

if __name__ == '__main__':
    dummy = int(sys.argv[sys.argv.index('--dummy') + 1]) if '--dummy' in sys.argv else 0
    outp = sys.argv[sys.argv.index('-o') + 1] if '-o' in sys.argv else f"cdna_kernels/{NAME}.s"
    open(outp, 'w').write(build(dummy))
    import json; json.dump(WS, open('ws.json', 'w'))
```
